```python
import torch

def _softmax(x, axis=-1):
    return torch.softmax(x, dim=axis)
def _gelu(x):
    return torch.nn.functional.gelu(x, approximate="tanh")
def _silu(x):
    return torch.nn.functional.silu(x)
def _sigmoid(x):
    return torch.sigmoid(x)
def _layernorm(x, axis=-1, eps=1e-5):
    m = x.mean(dim=axis, keepdim=True)
    v = x.var(dim=axis, keepdim=True, unbiased=False)
    return (x - m) / torch.sqrt(v + eps)
def _scatter_add(tgt, idx, src, axis=0):
    return tgt.clone().index_add_(axis, idx, src)
def _segment_sum(src, seg, n):
    out = torch.zeros((n,) + src.shape[1:], dtype=src.dtype)
    return out.index_add_(0, seg, src)
def _pad(x, pw):
    flat = tuple(v for pair in reversed(pw) for v in pair)
    return torch.nn.functional.pad(x, flat)

kernel_name = 'sequential_preLN__spectral_fnet__glu_gated_glu__prompt'

def setup_inputs():

    _w = (lambda a: (lambda t: t.to(torch.bfloat16) if t.is_floating_point() else t)(torch.as_tensor(a)))
    def _A_setup():
        B, S, D = 1, 2048, 576
        ns = torch.arange(S)[:, None] * torch.arange(S)[None, :]
        nd = torch.arange(D)[:, None] * torch.arange(D)[None, :]
        Ws_re = torch.cos(-2.0 * torch.pi * ns / S).to(float)
        Ws_im = torch.sin(-2.0 * torch.pi * ns / S).to(float)
        Wd_re = torch.cos(-2.0 * torch.pi * nd / D).to(float)
        Wd_im = torch.sin(-2.0 * torch.pi * nd / D).to(float)
        return {
            "x": _w((lambda *s: torch.randn(*s, dtype=torch.bfloat16) * 0.05)(B, S, D)),
            "dft_seq_re": _w(Ws_re),
            "dft_seq_im": _w(Ws_im),
            "dft_hid_re": _w(Wd_re),
            "dft_hid_im": _w(Wd_im),
        }
    _A_in = _A_setup()

    def _B_setup():
        B, S, D, F = 1, 2048, 576, 4608
        return {
            "x": _w((lambda *s: torch.randn(*s, dtype=torch.bfloat16) * 0.05)(B, S, D)),
            "w_gate": _w((lambda *s: torch.randn(*s, dtype=torch.bfloat16) * 1.6)(D, F)),
            "w_up": _w((lambda *s: torch.randn(*s, dtype=torch.bfloat16) * 0.4)(D, F)),
            "w_down": _w((lambda *s: torch.randn(*s, dtype=torch.bfloat16) * 0.4)(F, D)),
        }
    _B_in = _B_setup()

    return {
        "A_x": _A_in["x"],
        "A_dft_seq_re": _A_in["dft_seq_re"],
        "A_dft_seq_im": _A_in["dft_seq_im"],
        "A_dft_hid_re": _A_in["dft_hid_re"],
        "A_dft_hid_im": _A_in["dft_hid_im"],
        "B_x": _B_in["x"],
        "B_w_gate": _B_in["w_gate"],
        "B_w_up": _B_in["w_up"],
        "B_w_down": _B_in["w_down"],
    }

def reference(A_x, A_dft_seq_re, A_dft_seq_im, A_dft_hid_re, A_dft_hid_im, B_x, B_w_gate, B_w_up, B_w_down):
    def _A_ref(x, dft_seq_re, dft_seq_im, dft_hid_re, dft_hid_im):
        a = torch.einsum("bsd,ed->bse", x, dft_hid_re)
        b = torch.einsum("bsd,ed->bse", x, dft_hid_im)
        y = torch.einsum("ts,bse->bte", dft_seq_re, a) - torch.einsum("ts,bse->bte", dft_seq_im, b)
        return y

    def _B_ref(x, w_gate, w_up, w_down):
        g = torch.einsum("bsd,df->bsf", x, w_gate)
        u = torch.einsum("bsd,df->bsf", x, w_up)
        h = _sigmoid(g) * u
        return torch.einsum("bsf,fd->bsd", h, w_down)

    x = A_x
    h = x + _A_ref(_layernorm(x, axis=-1), A_dft_seq_re, A_dft_seq_im, A_dft_hid_re, A_dft_hid_im)
    h2 = h + _B_ref(_layernorm(h, axis=-1), B_w_gate, B_w_up, B_w_down)
    return h2
```

```python
HEADER = """; Kernarg layout for this problem (96 bytes, ptrs only, base s[0:1]):
"""

class Kernel:
    def __init__(self, name, grid, block, lds=0, vgpr=256, sgpr=102, accum=None):
        self.name = name; self.grid = grid; self.block = block; self.lds = lds
        self.vgpr = vgpr; self.sgpr = sgpr; self.accum = accum
        self.lines = []
        self._lab = 0
    def __call__(self, s, *rest):
        for x in (s,) + rest:
            for l in x.split("\n"):
                l = l.strip()
                if l:
                    self.lines.append(("" if l.endswith(":") else "    ") + l)
    def label(self, base="L"):
        self._lab += 1
        return "%s_%s_%d" % (self.name, base, self._lab)
    def text(self):
        out = [".globl %s" % self.name, ".p2align 8", ".type %s,@function" % self.name, "%s:" % self.name]
        out += self.lines
        return "\n".join(out) + "\n"
    def desc(self):
        accum = self.accum if self.accum is not None else min(256, (self.vgpr + 3) // 4 * 4)
        return """.p2align 6
.amdhsa_kernel %s
  .amdhsa_next_free_vgpr %d
  .amdhsa_next_free_sgpr %d
  .amdhsa_accum_offset %d
  .amdhsa_group_segment_fixed_size 0
  .amdhsa_kernarg_size 96
  .amdhsa_user_sgpr_count 2
  .amdhsa_user_sgpr_kernarg_segment_ptr 1
  .amdhsa_system_sgpr_workgroup_id_x 1
  .amdhsa_float_denorm_mode_32 3
  .amdhsa_float_denorm_mode_16_64 3
.end_amdhsa_kernel
""" % (self.name, self.vgpr, self.sgpr, accum)

def make_file(launches, extra_header=""):
    s = HEADER + extra_header
    for k in launches:
        s += "; @launch kernel=%s grid=(%d,%d,%d) block=(%d,%d,%d) lds=%d\n" % ((k.name,) + tuple(k.grid) + tuple(k.block) + (k.lds,))
    s += '.amdgcn_target "amdgcn-amd-amdhsa--gfx950"\n.text\n'
    seen = []
    for k in launches:
        if k not in seen:
            seen.append(k)
    for k in seen:
        s += k.text()
    s += '.section .rodata,"a"\n'
    for k in seen:
        s += k.desc()
    return s

def srd(k, d, base, nbytes):
    k("s_mov_b32 s%d, s%d" % (d, base), "s_and_b32 s%d, s%d, 0xffff" % (d + 1, base + 1),
      "s_mov_b32 s%d, 0x%x" % (d + 2, nbytes), "s_mov_b32 s%d, 0x00020000" % (d + 3))
```

```python
from gen import *
import gen

class Slots:
    def __init__(self):
        self.main = []; self.side = {}
    def add(self, f):
        self.main.append(f); return len(self.main) - 1
    def at(self, i, f):
        self.side.setdefault(i, []).append(f)
    def spread(self, lo, hi, fs):
        n = len(fs)
        for j, f in enumerate(fs):
            self.at(lo + (j * (hi - lo)) // n, f)
    def emit(self):
        for f in self.side.get(-1, []): f()
        for i, f in enumerate(self.main):
            f()
            for g in self.side.get(i, []): g()

def gen_k5(NS=4, BD=3):
    NST = 15
    SL = 24576
    k = K("k5_kernel", (240, 1, 1), (256, 1, 1), lds=NS * SL, vgpr=256 + BD * 16, sgpr=64, accum=256)
    k.guard(240)
    k("s_load_dwordx2 s[4:5], s[0:1], 64", "s_load_dwordx2 s[6:7], s[0:1], 88")
    k.wave_id(3, 1)
    map240(k)
    k("v_and_b32 v1, 63, v0")
    k("s_mul_i32 s31, s3, 9216", "s_mul_i32 s32, s26, 384", "s_add_u32 s31, s31, s32")
    for i in range(3):
        k("v_add_u32 v2, %d, v1" % (64 * i), "v_mul_u32_u24 v3, 171, v2", "v_lshrrev_b32 v3, 12, v3",
          "v_mul_u32_u24 v7, 24, v3", "v_sub_u32 v2, v2, v7", "v_and_b32 v7, 6, v3", "v_xor_b32 v2, v2, v7",
          "v_mul_u32_u24 v3, 1152, v3", "v_lshl_add_u32 v2, v2, 4, v3", "v_add_u32 v2, s31, v2")
        k("v_subrev_u32 v%d, %d, v2" % (4 + i, 1024 * i))
    k("s_lshl_b32 s31, s25, 3", "s_lshl_b32 s32, s3, 1", "s_add_u32 s31, s31, s32", "s_mul_i32 s31, s31, 147456",
      "v_lshlrev_b32 v8, 4, v1", "v_add_u32 v8, s31, v8", "v_add_u32 v9, 147456, v8")
    k("v_lshrrev_b32 v2, 2, v1", "v_mul_u32_u24 v3, 384, v2", "v_and_b32 v7, 3, v1", "v_lshl_add_u32 v3, v7, 3, v3",
      "v_bfe_u32 v2, v1, 3, 2")
    for m in range(4):
        k("v_xor_b32 v7, %d, v2" % m, "v_lshl_add_u32 v%d, v7, 5, v3" % (10 + m),
          "v_add_u32 v%d, 0x10000, v%d" % (14 + m, 10 + m), "v_add_u32 v%d, 0x20000, v%d" % (18 + m, 10 + m))
    k("s_mul_i32 s33, s24, %d" % (15 * 73728),
      "s_mul_i32 s36, s24, %d" % (15 * 2048),
      "s_mul_i32 s35, s3, 3072")
    k("s_waitcnt lgkmcnt(0)")
    srd(k, 8, 4, F * D * 2)
    k.ws_srd(12, 6, WS_HH, SZ_HH)
    k.ws_srd(16, 6, WS_P5, SZ_P)
    ACC = 32
    WF = 128
    at = {}; bt = {}; ft = {}
    def w_dma(j):
        fs = []
        for ks2 in range(2):
            def setup(ks2=ks2):
                k("s_add_u32 s37, s33, %d" % ((2 * j + ks2) * 36864), "s_add_u32 m0, s35, %d" % ((j % NS) * SL + ks2 * 12288), "s_nop 0")
            fs.append(setup)
            for i in range(3):
                def f(i=i):
                    at[j] = k.vm("buffer_load_dwordx4 v%d, s[8:11], s37 offen offset:%d lds" % (4 + i, i * 1024))
                fs.append(f)
        return fs
    def h_ld(j, ks2):
        fs = []
        if ks2 == 0:
            fs.append(lambda: k("s_add_u32 s38, s36, %d" % (j * 2048)))
        else:
            fs.append(lambda: k("s_add_u32 s39, s36, %d" % (j * 2048)))
        for tt in range(2):
            def f(tt=tt):
                bt[(j, ks2)] = k.vm("buffer_load_dwordx4 %s, v%d, s[12:15], s%d offen offset:%d" % (
                    vr((j % BD) * 16 + ks2 * 8 + tt * 4, 4, "a"), 8 + tt, 38 + ks2, ks2 * 1024))
            fs.append(f)
        return fs
    def w_rd(j, ks2):
        fs = []
        for dt in range(12):
            for h in range(2):
                def f(dt=dt, h=h):
                    off = (j % NS) * SL + ks2 * 12288 + h * 6144 + (dt >> 2) * 128
                    v = 10 + (dt & 3) + 4 * (off // 65536)
                    ft[(j, ks2, dt)] = k.lg("ds_read_b64_tr_b16 %s, v%d offset:%d" % (vr(WF + ks2 * 48 + dt * 4 + h * 2, 2), v, off % 65536))
                fs.append(f)
        return fs
    for j in range(max(NS, BD)):
        if j < NS:
            for f in w_dma(j): f()
        if j < BD:
            for f in h_ld(j, 0) + h_ld(j, 1): f()
    k.wait(vm=at[0]); k("s_barrier")
    for f in w_rd(0, 0): f()
    for j in range(NST):
        for ks2 in range(2):
            sl = Slots()
            for dt in range(12):
                for tt in range(2):
                    def f(dt=dt, tt=tt):
                        k.wait(vm=bt[(j, ks2)], lg=ft[(j, ks2, dt)])
                        a = ACC + (dt * 2 + tt) * 4
                        k(mfma(a, WF + ks2 * 48 + dt * 4, (j % BD) * 16 + ks2 * 8 + tt * 4, None if (j == 0 and ks2 == 0) else a, bp="a"))
                    sl.add(f)
            if ks2 == 0:
                sl.spread(0, 20, w_rd(j, 1))
                if j >= 1 and j - 1 + BD < NST:
                    sl.spread(2, 10, h_ld(j - 1 + BD, 1))
            else:
                if j + 1 < NST:
                    def bar():
                        k.wait(vm=at[j + 1], lg=k.lg_i); k("s_barrier")
                    sl.at(1, bar)
                    sl.spread(1, 22, w_rd(j + 1, 0))
                    if j + NS < NST:
                        sl.spread(2, 20, w_dma(j + NS))
                if j + BD < NST:
                    sl.spread(20, 24, h_ld(j + BD, 0))
            sl.emit()
    k("s_lshl_b32 s40, s24, 6", "s_lshl_b32 s41, s25, 2", "s_add_u32 s40, s40, s41", "s_add_u32 s40, s40, s3", "s_mul_i32 s40, s40, 36",
      "s_mul_i32 s41, s26, 12", "s_add_u32 s40, s40, s41", "s_lshl_b32 s40, s40, 10",
      "s_add_u32 s41, s40, 4096", "s_add_u32 s42, s40, 8192", "v_lshlrev_b32 v8, 4, v1", "s_nop 4")
    store_partials(k, lambda i: (ACC + (2 * i) * 4, ACC + (2 * i + 1) * 4), 12, 8, 16,
                   [(40 + i // 4, (i % 4) * 1024) for i in range(12)], WF)
    k.end()
    return k

def gen_k4():
    SL = 24576
    k = K("k4_kernel", (256, 1, 1), (256, 1, 1), lds=6 * SL, vgpr=512, sgpr=64, accum=256)
    k.guard(256)
    k("s_load_dwordx4 s[20:23], s[0:1], 48", "s_load_dwordx2 s[6:7], s[0:1], 88")
    k("s_and_b32 s24, s2, 7", "s_lshl_b32 s24, s24, 5", "s_lshr_b32 s25, s2, 3", "s_add_u32 s24, s24, s25",
      "s_cmp_ge_u32 s24, 252", "s_cbranch_scc1 %s_end" % k.name,
      "s_mul_i32 s25, s24, 293", "s_lshr_b32 s25, s25, 11",
      "s_mul_i32 s26, s25, 7", "s_sub_u32 s26, s24, s26",
      "s_mul_i32 s27, s26, 37450", "s_lshr_b32 s27, s27, 11",
      "s_add_u32 s28, s26, 1", "s_mul_i32 s28, s28, 37450", "s_lshr_b32 s28, s28, 11", "s_sub_u32 s28, s28, s27")
    k.wave_id(3, 1)
    k("v_and_b32 v1, 63, v0")
    k("v_lshrrev_b32 v2, 4, v1", "v_and_b32 v3, 15, v1", "s_and_b32 s29, s3, 1", "s_lshl_b32 s29, s29, 3",
      "v_lshlrev_b32 v6, 1, v2", "v_or_b32 v6, s29, v6", "v_xor_b32 v3, v3, v6",
      "v_mul_u32_u24 v2, 9216, v2", "v_lshl_add_u32 v4, v3, 4, v2",
      "s_mul_i32 s29, s3, %d" % (8 * 9216), "s_lshl_b32 s30, s25, 8", "s_add_u32 s29, s29, s30",
      "v_add_u32 v4, s29, v4", "v_add_u32 v5, %d, v4" % (4 * 9216 - 1024))
    k("v_lshlrev_b32 v2, 4, v1", "s_mul_i32 s29, s3, 36864", "v_add_u32 v6, s29, v2", "v_add_u32 v7, %d, v6" % (18432 - 1024),
      "s_mul_i32 s31, s3, 9216", "v_add_u32 v8, s31, v2",
      "s_lshl_b32 s29, s25, 2", "s_add_u32 s29, s29, s3", "s_lshl_b32 s29, s29, 10", "v_add_u32 v9, s29, v2")
    k("v_mov_b32 v10, v2", "v_add_u32 v11, 0x10000, v2", "v_add_u32 v12, 0x20000, v2")
    k("v_lshrrev_b32 v2, 4, v1", "v_bfe_u32 v3, v1, 2, 2", "v_lshl_add_u32 v2, v2, 3, v3", "v_lshlrev_b32 v2, 8, v2",
      "v_and_b32 v3, 3, v1", "v_lshl_add_u32 v2, v3, 3, v2", "v_bfe_u32 v3, v1, 2, 3", "s_lshl_b32 s29, s3, 1", "v_xor_b32 v3, s29, v3")
    for ft_ in range(2):
        if ft_:
            k("v_xor_b32 v3, 1, v3")
        k("v_lshl_add_u32 v%d, v3, 5, v2" % (13 + 3 * ft_), "v_add_u32 v%d, 0x10000, v%d" % (14 + 3 * ft_, 13 + 3 * ft_),
          "v_add_u32 v%d, 0x20000, v%d" % (15 + 3 * ft_, 13 + 3 * ft_))
    k("s_lshl_b32 s30, s3, 11",
      "s_mul_i32 s32, s27, 18432",
      "s_mul_i32 s33, s27, 147456")
    k("s_waitcnt lgkmcnt(0)")
    srd(k, 8, 20, D * F * 2)
    srd(k, 12, 22, D * F * 2)
    k.ws_srd(16, 6, WS_HN, XB)
    k.ws_srd(40, 6, WS_HH, SZ_HH)
    AFR = 32; ACC = 64
    def wreg(ks, m):
        return ("a", (ks * 4 + m) * 4) if ks < 16 else ("v", 224 + ((ks - 16) * 4 + m) * 4)
    ut = {}; ct = {}; wt = {}; af = {}
    def unit_dma(u):
        fs = []
        base = (u % 6) * SL
        for mat in range(2):
            def setup(mat=mat):
                if mat == 0:
                    k("s_mov_b32 s34, %d" % (u * 294912))
                k("s_add_u32 m0, s30, %d" % (base + mat * 8192), "s_nop 0")
            fs.append(setup)
            for i in range(2):
                fs.append(lambda mat=mat, i=i: k.vm("buffer_load_dwordx4 v%d, s[%d:%d], s34 offen offset:%d lds" % (4 + i, 8 + 4 * mat, 11 + 4 * mat, 1024 * i)))
        fs.append(lambda: k("s_add_u32 s35, s32, %d" % (u * 1024), "s_add_u32 m0, s30, %d" % (base + 16384), "s_nop 0"))
        for i in range(2):
            def f(i=i):
                ut[u] = k.vm("buffer_load_dwordx4 v%d, s[16:19], s35 offen offset:%d lds" % (6 + i, 1024 * i))
            fs.append(f)
        return fs
    def chunk_dma(p):
        fs = []
        base = ((p - 1) % 4) * 36864
        for i in range(9):
            if i % 4 == 0:
                fs.append(lambda i=i: k("s_add_u32 s35, s32, %d" % ((8 + 2 * (p - 1)) * 18432 + i * 1024),
                                        "s_add_u32 m0, s31, %d" % (base + i * 1024), "s_nop 0"))
            def f(i=i):
                ct[p] = k.vm("buffer_load_dwordx4 v8, s[16:19], s35 offen offset:%d lds" % ((i % 4) * 1024))
            fs.append(f)
        return fs
    def w_rd(u):
        fs = []
        for m in range(4):
            for h in range(2):
                def f(m=m, h=h):
                    off = (u % 6) * SL + (m >> 1) * 8192 + h * 1024
                    p, r = wreg(u, m)
                    wt[(u, m)] = k.lg("ds_read_b64_tr_b16 %s, v%d offset:%d" % (vr(r + 2 * h, 2, p), 13 + 3 * (m & 1) + off // 65536, off % 65536))
                fs.append(f)
        return fs
    def a_rd(key, buf, off):
        def f():
            af[key] = k.lg("ds_read_b128 %s, v%d offset:%d" % (vr(AFR + buf * 4), 10 + off // 65536, off % 65536))
        return f
    def epi(areg, tile):
        fs = []
        for i in range(8): fs.append(lambda i=i: k("v_exp_f32 v%d, v%d" % (areg + i, areg + i)))
        for i in range(8): fs.append(lambda i=i: k("v_add_f32 v%d, 1.0, v%d" % (areg + i, areg + i)))
        for i in range(8): fs.append(lambda i=i: k("v_rcp_f32 v%d, v%d" % (areg + i, areg + i)))
        for i in range(8): fs.append(lambda i=i: k("v_mul_f32 v%d, v%d, v%d" % (areg + i, areg + i, areg + 8 + i)))
        for i in range(4): fs.append(lambda i=i: k("v_cvt_pk_bf16_f32 v%d, v%d, v%d" % (areg + 8 + i, areg + 2 * i, areg + 2 * i + 1)))
        def st():
            k("s_add_u32 s36, s33, %d" % (tile * 147456))
            k.vm("buffer_store_dwordx4 %s, v9, s[40:43], s36 offen %s" % (vr(areg + 8), gen.ST))
        fs.append(st)
        return fs
    def pfrag(p, ks, tau):
        nt = 2 if p <= 5 else 1
        seq = ks * nt + tau
        g = (p - 1) * 36 + seq
        return (("p", p, ks, tau), g % 8, ((p - 1) % 4) * 36864 + tau * 18432 + ks * 1024)
    for u in range(6):
        for f in unit_dma(u): f()
    k.wait(vm=ut[0]); k("s_barrier")
    for f in w_rd(0): f()
    for tau in range(8): a_rd(("u", 0, tau), tau, 16384 + tau * 1024)()
    for u in range(18):
        sl = Slots()
        for tau in range(8):
            for m in range(4):
                def f(tau=tau, m=m):
                    k.wait(lg=max(af[("u", u, tau)], wt[(u, m)]))
                    a = ACC + tau * 16 + m * 4
                    p, r = wreg(u, m)
                    k(mfma(a, r, AFR + tau * 4, None if u == 0 else a, ap=p))
                sl.add(f)
        def bar(u=u):
            k.wait(vm=(ut[u + 1] if u < 17 else ct[1]), lg=k.lg_i); k("s_barrier")
        sl.at(7, bar)
        if u < 17:
            base = ((u + 1) % 6) * SL + 16384
            for tau in range(8):
                sl.at(max(7, 4 * tau + 3), a_rd(("u", u + 1, tau), tau, base + tau * 1024))
            sl.spread(8, 24, w_rd(u + 1))
        else:
            for b in range(8):
                sl.at(max(7, 4 * b + 3), a_rd(*pfrag(1, b // 2, b % 2)))
        if u + 6 < 18:
            sl.spread(9, 30, unit_dma(u + 6))
        elif u in (13, 14, 16, 17):
            sl.spread(9, 30, chunk_dma({13: 1, 14: 2, 16: 3, 17: 4}[u]))
        sl.emit()
    SETS = {1: 4, 2: 0, 3: 1, 4: 2, 5: 3, 6: 4}
    q = [(ACC + t * 16, t) for t in range(8)]
    NDR = {1: 4, 2: 3, 3: 3, 4: 3, 5: 3, 6: 2}
    def do_pass(p):
        nt = 2 if p <= 5 else 1
        sl = Slots()
        for ks in range(18):
            for tau in range(nt):
                key, buf, off = pfrag(p, ks, tau)
                for m in range(4):
                    def f(ks=ks, tau=tau, m=m, key=key, buf=buf):
                        k.wait(lg=af[key])
                        a = ACC + SETS[p] * 32 + tau * 16 + m * 4
                        pp, r = wreg(ks, m)
                        k(mfma(a, r, AFR + buf * 4, None if ks == 0 else a, ap=pp))
                    idx = sl.add(f)
                seq = ks * nt + tau + 8
                if seq < 18 * nt:
                    sl.at(idx, a_rd(*pfrag(p, seq // nt, seq % nt)))
                elif p < 6:
                    s2 = seq - 18 * nt
                    nt2 = 2 if p + 1 <= 5 else 1
                    if s2 == 0:
                        def bar(p=p):
                            k.wait(vm=ct[p + 1], lg=k.lg_i); k("s_barrier")
                        sl.at(idx, bar)
                        if p + 4 <= 6:
                            sl.spread(idx + 1, idx + 24, chunk_dma(p + 4))
                    sl.at(idx, a_rd(*pfrag(p + 1, s2 // nt2, s2 % nt2)))
        n = len(sl.main)
        ops = []
        for _ in range(NDR[p]):
            ops += epi(*q.pop(0))
        sl.spread(3, n - 2, ops)
        sl.emit()
        for tau in range(nt):
            q.append((ACC + SETS[p] * 32 + tau * 16, 8 + 2 * (p - 1) + tau))
    for p in range(1, 6):
        do_pass(p)
    L19 = k.label("p6")
    k("s_cmp_eq_u32 s28, 19", "s_cbranch_scc1 " + L19)
    saved = (k.vm_i, k.vm_d, k.lg_i, k.lg_d, list(q))
    k("s_nop 7")
    for a, t in q:
        for f in epi(a, t): f()
    k("s_endpgm")
    k(L19 + ":")
    k.vm_i, k.vm_d, k.lg_i, k.lg_d, q[:] = saved
    do_pass(6)
    k("s_nop 7")
    for a, t in q:
        for f in epi(a, t): f()
    k.end()
    return k
```

```python
import sys, struct
from asmlib import Kernel, make_file, srd

S, D, F = 2048, 576, 4608
XB = S * D * 2
WS_AB = 0x0000000; SZ_AB = 128 * 36 * 1024
WS_P2 = 0x0500000; SZ_P = 5 * XB
WS_HN = 0x1100000
WS_HB = 0x1400000
WS_HH = 0x1700000; SZ_HH = 128 * 144 * 1024
WS_P5 = 0x2A00000
LOG2E = 1.4426950408889634

def f32(x):
    return "0x%08x" % struct.unpack("<I", struct.pack("<f", x))[0]

def vr(b, n=4, p="v"):
    return "%s[%d:%d]" % (p, b, b + n - 1)

class K(Kernel):
    def __init__(self, *a, **kw):
        super().__init__(*a, **kw)
        self.vm_i = 0; self.vm_d = 0; self.lg_i = 0; self.lg_d = 0
    def vm(self, s):
        self(s); self.vm_i += 1; return self.vm_i
    def lg(self, s):
        self(s); self.lg_i += 1; return self.lg_i
    def wait(self, vm=None, lg=None):
        parts = []
        if vm is not None and vm > self.vm_d:
            n = min(self.vm_i - vm, 63); parts.append("vmcnt(%d)" % n); self.vm_d = self.vm_i - n
        if lg is not None and lg > self.lg_d:
            n = min(self.lg_i - lg, 15); parts.append("lgkmcnt(%d)" % n); self.lg_d = self.lg_i - n
        if parts:
            self("s_waitcnt " + " ".join(parts))
    def wait_all(self):
        self.wait(vm=self.vm_i, lg=self.lg_i)
    def guard(self, n):
        self("s_cmp_ge_u32 s2, %d" % n, "s_cbranch_scc1 %s_end" % self.name)
    def end(self):
        self("%s_end:" % self.name, "s_endpgm")
    def ws_srd(self, d, wsb, off, size):
        self("s_add_u32 s%d, s%d, 0x%x" % (d, wsb, off), "s_addc_u32 s%d, s%d, 0" % (d + 1, wsb + 1),
             "s_and_b32 s%d, s%d, 0xffff" % (d + 1, d + 1),
             "s_mov_b32 s%d, 0x%x" % (d + 2, size), "s_mov_b32 s%d, 0x00020000" % (d + 3))
    def wave_id(self, sreg, vtmp):
        self("v_lshrrev_b32 v%d, 6, v0" % vtmp, "s_nop 0", "v_readfirstlane_b32 s%d, v%d" % (sreg, vtmp), "s_nop 3")
    def rb(self, v):
        self("v_cvt_pk_bf16_f32 v%d, v%d, v%d" % (v, v, v), "v_lshlrev_b32 v%d, 16, v%d" % (v, v))

def mfma(d, a, b, c=None, ap="v", bp="v"):
    return "v_mfma_f32_16x16x32_bf16 %s, %s, %s, %s" % (vr(d), vr(a, 4, ap), vr(b, 4, bp), "0" if c is None else vr(c))

def interleave(k, main, side):
    n = len(main); m = len(side); j = 0
    for i, f in enumerate(main):
        f()
        tgt = (i + 1) * m // n
        while j < tgt:
            side[j](); j += 1
    while j < m:
        side[j](); j += 1

ST = ""

def gen_k1():
    k = K("k1_kernel", (256, 1, 1), (256, 1, 1), lds=147456, vgpr=256, sgpr=64)
    XN = 73728
    k.guard(256)
    k("s_load_dwordx2 s[4:5], s[0:1], 0", "s_load_dwordx4 s[20:23], s[0:1], 24", "s_load_dwordx2 s[6:7], s[0:1], 88")
    k.wave_id(3, 1)
    k("s_and_b32 s24, s2, 7", "s_lshr_b32 s25, s2, 3",
      "s_lshr_b32 s26, s24, 1", "s_lshl_b32 s26, s26, 3", "s_and_b32 s27, s25, 7", "s_add_u32 s26, s26, s27",
      "s_and_b32 s28, s24, 1",
      "s_lshr_b32 s27, s25, 3")
    k("v_and_b32 v1, 63, v0")
    k("v_lshrrev_b32 v2, 2, v1", "v_and_b32 v3, 3, v1", "v_mul_u32_u24 v4, 1152, v2", "v_lshl_add_u32 v4, v3, 4, v4")
    k("s_lshl_b32 s29, s26, 6", "s_lshl_b32 s30, s3, 4", "s_add_u32 s29, s29, s30", "s_mul_i32 s29, s29, 1152")
    k("v_lshrrev_b32 v5, 3, v1", "v_and_b32 v6, 7, v1", "v_lshrrev_b32 v7, 1, v5", "v_xor_b32 v6, v6, v7",
      "s_and_b32 s30, s3, 1", "s_lshl_b32 s31, s30, 2", "v_xor_b32 v6, s31, v6",
      "v_mul_u32_u24 v5, 1152, v5", "v_lshl_add_u32 v8, v6, 4, v5",
      "v_xor_b32 v6, 4, v6", "v_lshl_add_u32 v9, v6, 4, v5")
    k("s_mul_i32 s32, s27, 144", "s_mul_i32 s33, s30, 72", "s_add_u32 s32, s32, s33", "s_mul_i32 s32, s32, 1152",
      "s_lshr_b32 s33, s3, 1", "s_lshl_b32 s34, s33, 7", "s_add_u32 s32, s32, s34",
      "s_mul_i32 s35, s3, 9216")
    k("s_waitcnt lgkmcnt(0)")
    srd(k, 8, 4, XB)
    k("s_cmp_eq_u32 s28, 0", "s_cselect_b32 s12, s20, s22", "s_cselect_b32 s13, s21, s23", "s_and_b32 s13, s13, 0xffff",
      "s_mov_b32 s14, %d" % (D * D * 2), "s_mov_b32 s15, 0x00020000")
    k.ws_srd(16, 6, WS_AB, SZ_AB)
    RAW = 112
    xt = []
    for j in range(18):
        xt.append(k.vm("buffer_load_dwordx4 %s, v4, s[8:11], s29 offen offset:%d" % (vr(RAW + 4 * j), 64 * j)))
    def dma_pair(a, ldsbase):
        t = None
        for i in range(9):
            k("s_add_u32 m0, s35, %d" % (ldsbase + i * 1024), "s_add_u32 s36, s32, %d" % (a * 256 + i * 9216))
            t = k.vm("buffer_load_dwordx4 v%d, s[12:15], s36 offen lds" % (8 if i % 2 == 0 else 9))
        return t
    h0 = dma_pair(0, 0)
    h1 = dma_pair(1, 36864)
    k("s_mov_b32 s37, 0x3f803f80", "v_mov_b32 v10, 0", "v_mov_b32 v11, 0", "v_mov_b32 v12, 0", "v_mov_b32 v13, 0")
    for j in range(18):
        k.wait(vm=xt[j])
        for i in range(4):
            r = RAW + 4 * j + i
            k("v_dot2_f32_bf16 v%d, v%d, s37, v%d" % (10 + (i & 1), r, 10 + (i & 1)),
              "v_dot2_f32_bf16 v%d, v%d, v%d, v%d" % (12 + (i & 1), r, r, 12 + (i & 1)))
    k("s_nop 2", "v_add_f32 v10, v10, v11", "v_add_f32 v12, v12, v13", "s_nop 1")
    for qp in ("[1,0,3,2]", "[2,3,0,1]"):
        k("v_add_f32_dpp v10, v10, v10 quad_perm:%s row_mask:0xf bank_mask:0xf" % qp,
          "v_add_f32_dpp v12, v12, v12 quad_perm:%s row_mask:0xf bank_mask:0xf" % qp, "s_nop 1")
    k("v_mul_f32 v10, %s, v10" % f32(1.0 / D), "v_mul_f32 v12, %s, v12" % f32(1.0 / D),
      "v_fma_f32 v12, -v10, v10, v12", "v_max_f32 v12, 0, v12")
    k.rb(10); k.rb(12)
    k("v_add_f32 v12, %s, v12" % f32(1e-5)); k.rb(12)
    k("v_sqrt_f32 v12, v12", "s_nop 0"); k.rb(12)
    k("v_rcp_f32 v12, v12", "s_nop 0", "v_mul_f32 v10, v10, v12", "v_sub_f32 v10, 0, v10",
      "v_mov_b32 v11, v10", "v_mov_b32 v13, v12")
    k("v_bfe_u32 v14, v2, 2, 1", "v_lshrrev_b32 v15, 3, v2", "s_lshl_b32 s38, s30, 1", "v_add_u32 v15, s38, v15",
      "v_and_b32 v16, 3, v2", "v_lshl_add_u32 v15, v15, 2, v16", "v_lshlrev_b32 v16, 1, v3", "v_xor_b32 v15, v15, v16",
      "v_lshl_add_u32 v15, v3, 4, v15", "v_lshlrev_b32 v15, 4, v15",
      "v_mul_u32_u24 v14, 18432, v14", "v_add_u32 v15, v15, v14", "s_mul_i32 s38, s33, 36864", "s_add_u32 s38, s38, %d" % XN,
      "v_add_u32 v15, s38, v15")
    for j in range(18):
        T = 20 + (j % 2) * 12
        for i in range(4):
            r = RAW + 4 * j + i
            k("v_lshlrev_b32 v%d, 16, v%d" % (T + 2 * i, r), "v_and_b32 v%d, 0xffff0000, v%d" % (T + 2 * i + 1, r))
        for i in range(4):
            k("v_pk_fma_f32 %s, %s, v[12:13], v[10:11]" % (vr(T + 2 * i, 2), vr(T + 2 * i, 2)))
        for i in range(4):
            k("v_cvt_pk_bf16_f32 v%d, v%d, v%d" % (T + 8 + i, T + 2 * i, T + 2 * i + 1))
        k.lg("ds_write_b128 v15, %s offset:%d" % (vr(T + 8), j * 1024))
    k("v_lshrrev_b32 v16, 4, v1", "v_and_b32 v17, 15, v1", "v_lshlrev_b32 v18, 1, v16", "v_xor_b32 v18, v18, v17",
      "v_lshl_add_u32 v18, v16, 4, v18", "v_lshlrev_b32 v18, 4, v18", "v_add_u32 v18, s38, v18")
    k("v_lshrrev_b32 v19, 1, v17", "v_xor_b32 v19, v19, v16", "v_lshlrev_b32 v19, 4, v19", "v_lshl_add_u32 v19, v17, 7, v19",
      "s_lshl_b32 s39, s30, 13", "v_add_u32 v19, s39, v19", "v_xor_b32 v14, 64, v19",
      "v_add_u32 v16, 0x%x, v19" % XN, "v_add_u32 v17, 0x%x, v14" % XN)
    k.wait(lg=k.lg_i, vm=h0)
    k("s_barrier")
    XF = 112
    for t in range(2):
        for ks in range(18):
            k.lg("ds_read_b128 %s, v18 offset:%d" % (vr(XF + (t * 18 + ks) * 4), t * 18432 + ks * 1024))
    k.wait(lg=k.lg_i)
    k("s_barrier")
    h2 = dma_pair(2, XN)
    h3 = dma_pair(3, XN + 36864)
    ACC = 20
    BF = 60
    def stage_addr(ks):
        st = ks // 2; ks2 = ks % 2
        if st < 4:
            off = st * 18432
            if off + 4 * 2048 + 8192 + 2048 <= 65536 or True:
                pass
            return (19 if ks2 == 0 else 14), off
        if st < 8:
            return (16 if ks2 == 0 else 17), (st - 4) * 18432
        return (19 if ks2 == 0 else 14), 0
    def breads(ks):
        v, off = stage_addr(ks)
        toks = []
        for j in range(5):
            toks.append(k.lg("ds_read_b128 %s, v%d offset:%d" % (vr(BF + (ks % 2) * 20 + j * 4), v, off + j * 2048)))
        return toks
    bt = breads(0)
    for ks in range(18):
        nxt = ks + 1
        if nxt < 18:
            if nxt == 4:
                k.wait(vm=h1); k("s_barrier")
                L = k.label("skip8")
                k("s_cmp_ge_u32 s3, 2", "s_cbranch_scc1 " + L)
                for i in range(9):
                    k("s_add_u32 m0, s35, %d" % (i * 1024), "s_add_u32 s36, s32, %d" % (4 * 256 + i * 9216))
                    k("buffer_load_dwordx4 v%d, s[12:15], s36 offen lds" % (8 if i % 2 == 0 else 9))
                k(L + ":")
            elif nxt == 8:
                k("s_waitcnt vmcnt(9)", "s_barrier")
            elif nxt == 12:
                k("s_waitcnt vmcnt(0)", "s_barrier")
            nb = breads(nxt)
        for j in range(5):
            k.wait(lg=bt[j])
            for t in range(2):
                k(mfma(ACC + (j * 2 + t) * 4, XF + (t * 18 + ks) * 4, BF + (ks % 2) * 20 + j * 4, None if ks == 0 else ACC + (j * 2 + t) * 4))
        if nxt < 18:
            bt = nb
    k("s_lshl_b32 s40, s28, 6", "s_lshl_b32 s41, s26, 1", "s_add_u32 s40, s40, s41", "s_add_u32 s40, s40, s33",
      "s_mul_i32 s40, s40, 36", "s_mul_i32 s41, s27, 9", "s_add_u32 s40, s40, s41", "s_lshl_b32 s41, s30, 2", "s_add_u32 s40, s40, s41",
      "s_lshl_b32 s40, s40, 10", "s_add_u32 s42, s40, 4096",
      "s_cmp_eq_u32 s28, 0", "s_cselect_b32 s41, 0, 0x80008000", "v_lshlrev_b32 v2, 4, v1", "s_nop 4")
    for j in range(5):
        o = 60 + 4 * j
        for t in range(2):
            a = ACC + (j * 2 + t) * 4
            k("v_cvt_pk_bf16_f32 v%d, v%d, v%d" % (o + 2 * t, a, a + 1), "v_cvt_pk_bf16_f32 v%d, v%d, v%d" % (o + 2 * t + 1, a + 2, a + 3))
        for i in range(4):
            k("v_xor_b32 v%d, s41, v%d" % (o + i, o + i))
        k("buffer_store_dwordx4 %s, v2, s[16:19], s%d offen offset:%d %s" % (vr(o), 40 if j < 4 else 42, (j % 4) * 1024, ST))
    k.end()
    return k

def store_partials(k, acc_of, npairs, voff, srd_, soffs, tmp):
    for i in range(npairs):
        lo, hi = acc_of(i)
        o = tmp + 4 * (i % 4)
        k("v_cvt_pk_bf16_f32 v%d, v%d, v%d" % (o, lo, lo + 1), "v_cvt_pk_bf16_f32 v%d, v%d, v%d" % (o + 1, lo + 2, lo + 3),
          "v_cvt_pk_bf16_f32 v%d, v%d, v%d" % (o + 2, hi, hi + 1), "v_cvt_pk_bf16_f32 v%d, v%d, v%d" % (o + 3, hi + 2, hi + 3))
        k.vm("buffer_store_dwordx4 %s, v%d, s[%d:%d], s%d offen offset:%d %s" % (vr(o), voff, srd_, srd_ + 3, soffs[i][0], soffs[i][1], ST))

def map240(k):
    k("s_and_b32 s27, s2, 7", "s_lshr_b32 s28, s2, 3", "s_mul_i32 s29, s28, 43", "s_lshr_b32 s29, s29, 7",
      "s_mul_i32 s30, s29, 3", "s_sub_u32 s26, s28, s30", "s_mul_i32 s27, s27, 10", "s_add_u32 s27, s27, s29",
      "s_lshr_b32 s24, s27, 4", "s_and_b32 s25, s27, 15")

def gen_k2(NS=4, BD=3):
    NST = 13
    k = K("k2_kernel", (240, 1, 1), (256, 1, 1), lds=NS * 16384, vgpr=256, sgpr=64)
    k.guard(240)
    k("s_load_dwordx4 s[20:23], s[0:1], 8", "s_load_dwordx2 s[6:7], s[0:1], 88")
    k.wave_id(3, 1)
    map240(k)
    k("v_and_b32 v1, 63, v0")
    k("v_lshrrev_b32 v2, 3, v1", "v_and_b32 v3, 7, v1", "v_lshrrev_b32 v8, 1, v2", "v_xor_b32 v3, v3, v8",
      "s_lshl_b32 s31, s3, 5", "v_add_u32 v2, s31, v2", "v_lshlrev_b32 v2, 12, v2",
      "v_lshl_add_u32 v4, v3, 4, v2", "v_xor_b32 v3, 4, v3", "v_lshl_add_u32 v5, v3, 4, v2",
      "v_add_u32 v5, %d, v5" % (8 * 4096 - 1024), "v_add_u32 v6, %d, v4" % (16 * 4096 - 2048), "v_add_u32 v7, %d, v5" % (16 * 4096 - 2048))
    k("s_mul_i32 s31, s26, 12", "s_mul_i32 s32, s3, 3", "s_add_u32 s31, s31, s32", "s_lshl_b32 s31, s31, 10",
      "v_lshlrev_b32 v8, 4, v1", "v_add_u32 v8, s31, v8")
    k("v_lshrrev_b32 v2, 4, v1", "v_and_b32 v3, 15, v1", "v_lshrrev_b32 v9, 1, v3", "v_xor_b32 v9, v9, v2", "v_lshlrev_b32 v9, 4, v9",
      "v_lshl_add_u32 v10, v3, 7, v9", "v_xor_b32 v11, 64, v10", "v_add_u32 v12, 0x10000, v10", "v_add_u32 v13, 0x10000, v11")
    k("s_mul_i32 s33, s24, 13",
      "s_lshl_b32 s34, s25, 19",
      "s_lshl_b32 s35, s3, 12",
      "s_mul_i32 s36, s33, 73728")
    k("s_waitcnt lgkmcnt(0)")
    k("s_and_b32 s21, s21, 0xffff", "s_and_b32 s23, s23, 0xffff", "s_mov_b32 s8, s20", "s_mov_b32 s9, s21",
      "s_mov_b32 s10, %d" % (S * S * 2), "s_mov_b32 s11, 0x00020000")
    k.ws_srd(12, 6, WS_AB, SZ_AB)
    k.ws_srd(16, 6, WS_P2, SZ_P)
    ACC = 16
    AF = 112
    BFR = 176
    assert BFR + BD * 24 <= 256
    def a_dma(j):
        def setup():
            k("s_add_u32 s37, s33, %d" % j, "s_cmp_lt_u32 s37, 32", "s_cselect_b32 s8, s20, s22", "s_cselect_b32 s9, s21, s23",
              "s_and_b32 s37, s37, 31", "s_lshl_b32 s37, s37, 7", "s_add_u32 s37, s37, s34", "s_add_u32 m0, s35, %d" % ((j % NS) * 16384), "s_nop 0")
        def ld(i):
            def f():
                at[j] = k.vm("buffer_load_dwordx4 v%d, s[8:11], s37 offen offset:%d lds" % (4 + i, i * 1024))
            return f
        return [setup] + [ld(i) for i in range(4)]
    def b_ld(j, ks2):
        def setup():
            k("s_add_u32 s38, s36, %d" % ((2 * j + ks2) * 36864))
        def ld(i):
            def f():
                bt[(j, ks2)] = k.vm("buffer_load_dwordx4 %s, v8, s[12:15], s38 offen offset:%d" % (vr(BFR + (j % BD) * 24 + ks2 * 12 + i * 4), i * 1024))
            return f
        return [setup] + [ld(i) for i in range(3)]
    def a_rd(j, ks2):
        def rd(tt):
            def f():
                off = (j % NS) * 16384 + tt * 2048
                v = 10 + ks2 + (2 if off >= 65536 else 0)
                ft[(j, ks2, tt)] = k.lg("ds_read_b128 %s, v%d offset:%d" % (vr(AF + ks2 * 32 + tt * 4), v, off % 65536))
            return f
        return [rd(tt) for tt in range(8)]
    at = {}; bt = {}; ft = {}
    for j in range(max(NS, BD)):
        if j < NS:
            for f in a_dma(j): f()
        if j < BD:
            for f in b_ld(j, 0) + b_ld(j, 1): f()
    k.wait(vm=at[0]); k("s_barrier")
    for f in a_rd(0, 0): f()
    for j in range(NST):
        for ks2 in range(2):
            side = []
            if ks2 == 0:
                side += a_rd(j, 1)
                if j >= 1 and j - 1 + BD < NST:
                    side += b_ld(j - 1 + BD, 1)
            else:
                if j + 1 < NST:
                    k.wait(vm=at[j + 1], lg=k.lg_i); k("s_barrier")
                    side += a_rd(j + 1, 0)
                    if j + NS < NST:
                        side += a_dma(j + NS)
                if j + BD < NST:
                    side += b_ld(j + BD, 0)
            main = []
            for tt in range(8):
                for e in range(3):
                    def f(tt=tt, e=e):
                        k.wait(vm=bt[(j, ks2)], lg=ft[(j, ks2, tt)])
                        a = ACC + (e * 8 + tt) * 4
                        k(mfma(a, BFR + (j % BD) * 24 + ks2 * 12 + e * 4, AF + ks2 * 32 + tt * 4, None if (j == 0 and ks2 == 0) else a))
                    main.append(f)
            interleave(k, main[:20], side)
            for f in main[20:]: f()
    k("s_lshl_b32 s40, s24, 6", "s_lshl_b32 s41, s25, 2", "s_add_u32 s40, s40, s41", "s_mul_i32 s40, s40, 36864",
      "s_add_u32 s41, s40, 36864", "s_add_u32 s42, s40, 73728", "s_add_u32 s43, s40, 110592", "s_nop 4")
    store_partials(k, lambda i: (ACC + ((i % 3) * 8 + 2 * (i // 3)) * 4, ACC + ((i % 3) * 8 + 2 * (i // 3) + 1) * 4), 12, 8, 16,
                   [(40 + i // 3, (i % 3) * 1024) for i in range(12)], AF)
    k.end()
    return k

def gen_red(ln):
    k = K("k3_kernel" if ln else "k6_kernel", (256, 1, 1), (320, 1, 1), lds=1024, vgpr=96, sgpr=64)
    k.guard(256)
    k("s_load_dwordx2 s[4:5], s[0:1], %d" % (0 if ln else 72), "s_load_dwordx2 s[6:7], s[0:1], 88")
    k("s_and_b32 s24, s2, 7", "s_lshr_b32 s25, s2, 3", "s_and_b32 s26, s25, 3", "s_lshr_b32 s25, s25, 2", "s_lshl_b32 s24, s24, 3", "s_add_u32 s24, s24, s25")
    k("v_and_b32 v1, 3, v0", "v_bfe_u32 v2, v0, 2, 1", "v_lshrrev_b32 v3, 3, v0",
      "s_lshl_b32 s27, s26, 2", "v_add_u32 v4, s27, v1")
    k("v_lshl_add_u32 v5, v2, 5, v4", "v_lshlrev_b32 v5, 4, v5", "v_lshl_add_u32 v5, v3, 10, v5")
    k("v_mul_u32_u24 v6, 1152, v4", "v_lshrrev_b32 v7, 2, v0", "v_lshl_add_u32 v6, v7, 4, v6")
    k("v_lshlrev_b32 v7, 4, v0")
    k("v_bfe_u32 v9, v0, 2, 2", "v_lshl_add_u32 v9, v9, 4, v4", "v_lshlrev_b32 v9, 4, v9", "v_lshrrev_b32 v8, 4, v0", "v_lshl_add_u32 v8, v8, 10, v9")
    k("v_cmp_gt_u32 vcc, 288, v0", "v_mov_b32 v9, 0x40000000", "s_nop 0",
      "v_cndmask_b32 v5, v9, v5, vcc", "v_cndmask_b32 v6, v9, v6, vcc", "v_cndmask_b32 v7, v9, v7, vcc", "v_cndmask_b32 v8, v9, v8, vcc",
      "v_cndmask_b32 v10, 0, 1.0, vcc")
    k("s_mul_i32 s28, s24, 36864",
      "s_add_u32 s29, s28, 18432",
      "s_mul_i32 s30, s2, 9216", "s_add_u32 s31, s30, 4608")
    k("s_waitcnt lgkmcnt(0)")
    srd(k, 8, 4, XB)
    k.ws_srd(12, 6, WS_P2 if ln else WS_P5, SZ_P)
    k.ws_srd(16, 6, WS_HB, XB)
    if ln:
        k.ws_srd(20, 6, WS_HN, XB)
    P = 16
    R = 56
    V = 64
    toks = []
    for q in range(5):
        k("s_add_u32 s32, s28, %d" % (q * XB))
        k.vm("buffer_load_dwordx4 %s, v5, s[12:15], s32 offen" % vr(P + 8 * q))
        toks.append(k.vm("buffer_load_dwordx4 %s, v5, s[12:15], s32 offen offset:256" % vr(P + 8 * q + 4)))
    if ln:
        k.vm("buffer_load_dwordx4 %s, v6, s[8:11], s28 offen" % vr(R))
        rt = k.vm("buffer_load_dwordx4 %s, v6, s[8:11], s29 offen" % vr(R + 4))
    else:
        k.vm("buffer_load_dwordx4 %s, v7, s[16:19], s30 offen" % vr(R))
        rt = k.vm("buffer_load_dwordx4 %s, v7, s[16:19], s31 offen" % vr(R + 4))
    for q in range(5):
        k.wait(vm=toks[q])
        for h in range(2):
            for c in range(8):
                src = P + 8 * q + (c >> 2) * 4 + h * 2 + ((c & 3) >> 1)
                dst = V + h * 8 + c
                t = dst if q == 0 else 80 + (c % 4)
                k(("v_lshlrev_b32 v%d, 16, v%d" if c % 2 == 0 else "v_and_b32 v%d, 0xffff0000, v%d") % (t, src))
                if q:
                    k("v_add_f32 v%d, v%d, v%d" % (dst, dst, t))
    k.wait(vm=rt)
    if not ln:
        k("s_mov_b32 s33, %s" % f32(-1.0 / LOG2E))
    for h in range(2):
        for c in range(8):
            src = R + h * 4 + (c >> 1); dst = V + h * 8 + c; t = 80 + (c % 4)
            k(("v_lshlrev_b32 v%d, 16, v%d" if c % 2 == 0 else "v_and_b32 v%d, 0xffff0000, v%d") % (t, src))
            if ln:
                k("v_add_f32 v%d, v%d, v%d" % (dst, dst, t))
            else:
                k("v_fma_f32 v%d, v%d, s33, v%d" % (dst, dst, t))
    O = 16
    for i in range(8):
        k("v_cvt_pk_bf16_f32 v%d, v%d, v%d" % (O + i, V + 2 * i, V + 2 * i + 1))
    if not ln:
        k.vm("buffer_store_dwordx4 %s, v6, s[8:11], s28 offen" % vr(O))
        k.vm("buffer_store_dwordx4 %s, v6, s[8:11], s29 offen" % vr(O + 4))
        k.end()
        return k
    k.vm("buffer_store_dwordx4 %s, v7, s[16:19], s30 offen %s" % (vr(O), ST))
    k.vm("buffer_store_dwordx4 %s, v7, s[16:19], s31 offen %s" % (vr(O + 4), ST))
    for i in range(8):
        k("v_lshlrev_b32 v%d, 16, v%d" % (V + 2 * i, O + i), "v_and_b32 v%d, 0xffff0000, v%d" % (V + 2 * i + 1, O + i))
    k("v_lshrrev_b32 v11, 6, v0", "v_lshlrev_b32 v11, 3, v11", "v_lshl_add_u32 v11, v1, 6, v11", "v_lshlrev_b32 v12, 6, v1")
    def reduce2(a, ps):
        for ror in (4, 8):
            k("s_nop 1", "v_add_f32_dpp v%d, v%d, v%d row_ror:%d row_mask:0xf bank_mask:0xf" % (a, a, a, ror),
              "v_add_f32_dpp v%d, v%d, v%d row_ror:%d row_mask:0xf bank_mask:0xf" % (a + 1, a + 1, a + 1, ror))
        for sw in ("v_permlane16_swap_b32", "v_permlane32_swap_b32"):
            k("v_mov_b32 v%d, v%d" % (a + 2, a), "v_mov_b32 v%d, v%d" % (a + 3, a + 1), "s_nop 1",
              "%s v%d, v%d" % (sw, a, a + 2), "%s v%d, v%d" % (sw, a + 1, a + 3), "s_nop 1",
              "v_add_f32 v%d, v%d, v%d" % (a, a, a + 2), "v_add_f32 v%d, v%d, v%d" % (a + 1, a + 1, a + 3))
        k.lg("ds_write_b64 v11, %s offset:%d" % (vr(a, 2), ps * 256))
        k.wait(lg=k.lg_i); k("s_barrier")
        k.lg("ds_read_b128 v[32:35], v12 offset:%d" % (ps * 256))
        k.lg("ds_read_b128 v[36:39], v12 offset:%d" % (ps * 256 + 16))
        k.lg("ds_read_b64 v[40:41], v12 offset:%d" % (ps * 256 + 32))
        k.wait(lg=k.lg_i)
        k("v_pk_add_f32 v[32:33], v[32:33], v[34:35]", "v_pk_add_f32 v[36:37], v[36:37], v[38:39]",
          "v_pk_add_f32 v[32:33], v[32:33], v[40:41]", "v_pk_add_f32 %s, v[32:33], v[36:37]" % vr(a, 2))
    A = 44
    for h in range(2):
        k("v_add_f32 v%d, v%d, v%d" % (A + h, V + 8 * h, V + 8 * h + 1))
        for c in range(2, 8):
            k("v_add_f32 v%d, v%d, v%d" % (A + h, A + h, V + 8 * h + c))
    reduce2(A, 0)
    k("v_mul_f32 v%d, %s, v%d" % (A, f32(1.0 / D), A), "v_mul_f32 v%d, %s, v%d" % (A + 1, f32(1.0 / D), A + 1))
    B = 48
    for h in range(2):
        for c in range(8):
            t = 80 + (c % 4)
            k("v_sub_f32 v%d, v%d, v%d" % (t, V + 8 * h + c, A + h))
            if c == 0:
                k("v_mul_f32 v%d, v%d, v%d" % (B + h, t, t))
            else:
                k("v_fmac_f32 v%d, v%d, v%d" % (B + h, t, t))
        k("v_mul_f32 v%d, v%d, v10" % (B + h, B + h))
    reduce2(B, 1)
    for h in range(2):
        k("v_mul_f32 v%d, %s, v%d" % (B + h, f32(1.0 / D), B + h))
        k.rb(A + h); k.rb(B + h)
        k("v_add_f32 v%d, %s, v%d" % (B + h, f32(1e-5), B + h)); k.rb(B + h)
        k("v_sqrt_f32 v%d, v%d" % (B + h, B + h), "s_nop 0"); k.rb(B + h)
        k("v_rcp_f32 v%d, v%d" % (B + h, B + h), "s_nop 0", "v_mul_f32 v%d, %s, v%d" % (B + h, f32(-LOG2E), B + h),
          "v_mul_f32 v%d, v%d, v%d" % (A + h, A + h, B + h))
        for c in range(8):
            k("v_fma_f32 v%d, v%d, v%d, -v%d" % (V + 8 * h + c, V + 8 * h + c, B + h, A + h))
    O = 24
    for i in range(8):
        k("v_cvt_pk_bf16_f32 v%d, v%d, v%d" % (O + i, V + 2 * i, V + 2 * i + 1))
    k.vm("buffer_store_dwordx4 %s, v8, s[20:23], s28 offen %s" % (vr(O), ST))
    k.vm("buffer_store_dwordx4 %s, v8, s[20:23], s29 offen %s" % (vr(O + 4), ST))
    k.end()
    return k

if __name__ == "__main__":
    from gen45 import gen_k4, gen_k5
    ks = [gen_k1(), gen_k2(), gen_red(True), gen_k4(), gen_k5(), gen_red(False)]
    out = sys.argv[1] if len(sys.argv) > 1 else "full.s"
    n = int(sys.argv[2]) if len(sys.argv) > 2 else 6
    open(out, "w").write(make_file(ks[:n]))
```
